```python
import torch

def _softmax(x, axis=-1):
    return torch.softmax(x, dim=axis)
def _gelu(x):
    return torch.nn.functional.gelu(x, approximate="tanh")
def _silu(x):
    return torch.nn.functional.silu(x)
def _sigmoid(x):
    return torch.sigmoid(x)
def _layernorm(x, axis=-1, eps=1e-5):
    m = x.mean(dim=axis, keepdim=True)
    v = x.var(dim=axis, keepdim=True, unbiased=False)
    return (x - m) / torch.sqrt(v + eps)
def _scatter_add(tgt, idx, src, axis=0):
    return tgt.clone().index_add_(axis, idx, src)
def _segment_sum(src, seg, n):
    out = torch.zeros((n,) + src.shape[1:], dtype=src.dtype)
    return out.index_add_(0, seg, src)
def _pad(x, pw):
    flat = tuple(v for pair in reversed(pw) for v in pair)
    return torch.nn.functional.pad(x, flat)

kernel_name = 'gated_mix__ssm_conv_s4d__dense_activation_squared_relu__prompt'

def setup_inputs():

    _w = (lambda a: (lambda t: t.to(torch.bfloat16) if t.is_floating_point() else t)(torch.as_tensor(a)))
    def _A_setup():
        Bsz, L, D, N = 1, 2048, 448, 256
        return {
            "u": _w((lambda *s: torch.randn(*s, dtype=torch.bfloat16) * 0.05)(Bsz, L, D)),
            "log_A_real": _w((lambda *s: torch.randn(*s, dtype=torch.bfloat16) * 3.2)(D, N) * 0.5),
            "A_imag": _w((lambda *s: torch.randn(*s, dtype=torch.bfloat16) * 0.1)(D, N) * 3.14),
            "C_real": _w((lambda *s: torch.randn(*s, dtype=torch.bfloat16) * 0.8)(D, N) / N ** 0.5),
            "C_imag": _w((lambda *s: torch.randn(*s, dtype=torch.bfloat16) * 0.8)(D, N) / N ** 0.5),
            "log_dt": _w((lambda *s: torch.randn(*s, dtype=torch.bfloat16) * 0.1)(D) * 0.5 - 4.0),
            "D_skip": _w((lambda *s: torch.randn(*s, dtype=torch.bfloat16) * 0.1)(D)),
        }
    _A_in = _A_setup()

    def _B_setup():
        B, S, D, F = 1, 2048, 448, 1792
        return {
            "x": _w((lambda *s: torch.randn(*s, dtype=torch.bfloat16) * 0.05)(B, S, D)),
            "w1": _w((lambda *s: torch.randn(*s, dtype=torch.bfloat16) * 0.05)(D, F)),
            "b1": _w((lambda *s: torch.randn(*s, dtype=torch.bfloat16) * 0.05)(F)),
            "w2": _w((lambda *s: torch.randn(*s, dtype=torch.bfloat16) * 0.05)(F, D)),
            "b2": _w((lambda *s: torch.randn(*s, dtype=torch.bfloat16) * 0.05)(D)),
        }
    _B_in = _B_setup()

    return {
        "A_u": _A_in["u"],
        "A_log_A_real": _A_in["log_A_real"],
        "A_A_imag": _A_in["A_imag"],
        "A_C_real": _A_in["C_real"],
        "A_C_imag": _A_in["C_imag"],
        "A_log_dt": _A_in["log_dt"],
        "A_D_skip": _A_in["D_skip"],
        "B_x": _B_in["x"],
        "B_w1": _B_in["w1"],
        "B_b1": _B_in["b1"],
        "B_w2": _B_in["w2"],
        "B_b2": _B_in["b2"],
        "gate_w": _w((lambda *s: torch.randn(*s, dtype=torch.bfloat16) * 0.05)(448) * 16.0),
    }

def reference(A_u, A_log_A_real, A_A_imag, A_C_real, A_C_imag, A_log_dt, A_D_skip, B_x, B_w1, B_b1, B_w2, B_b2, gate_w):
    def _A_ref(u, log_A_real, A_imag, C_real, C_imag, log_dt, D_skip):
        L = u.shape[1]
        dt = torch.exp(log_dt)
        A = -torch.exp(log_A_real) + 1j * A_imag
        C = (C_real + 1j * C_imag) * dt[:, None]
        pos = (lambda x, dt: x.to(dt))(torch.arange(L), log_dt.dtype)
        P = torch.exp((A * dt[:, None])[:, :, None] * pos[None, None, :])
        K = 2.0 * torch.einsum("dn,dnl->dl", C, P).real
        L2 = 2 * L
        u_t = (lambda x, *d: x.permute(*d))(u, 0, 2, 1)
        Kf = (lambda x, *a, **k: torch.fft.rfft(x.float(), *a, **k))(K, L2)
        Uf = (lambda x, *a, **k: torch.fft.rfft(x.float(), *a, **k))(u_t, L2)
        y = (lambda x, *a, **k: torch.fft.irfft(x, *a, **k).to(torch.bfloat16))(Uf * Kf[None, :, :], L2)[:, :, :L]
        y = (lambda x, *d: x.permute(*d))(y, 0, 2, 1)
        return y + u * D_skip[None, None, :]

    def _B_ref(x, w1, b1, w2, b2):
        h = torch.einsum("bsd,df->bsf", x, w1) + b1
        zero = torch.zeros_like(h)
        r = torch.where(h > zero, h, zero)
        h = r * r
        out = torch.einsum("bsf,fd->bsd", h, w2) + b2
        return out

    x = A_u
    g = _sigmoid((x * gate_w).sum(-1, keepdims=True))
    a = _A_ref(x, A_log_A_real, A_A_imag, A_C_real, A_C_imag, A_log_dt, A_D_skip)
    b = _B_ref(x, B_w1, B_b1, B_w2, B_b2)
    return g * a + (1 - g) * b
```

```python
NAME = "gated_mix__ssm_conv_s4d__dense_activation_squared_relu__prompt"

HEADER = open("cdna_kernels/" + NAME + ".s.ref").read().split("; Override launch")[0]


class Asm:
    def __init__(self):
        self.lines = []
        self.uid = 0

    def __call__(self, s):
        for ln in s.strip("\n").split("\n"):
            ln = ln.strip()
            if not ln:
                continue
            if ln.endswith(":"):
                self.lines.append(ln)
            else:
                self.lines.append("    " + ln)

    def label(self, base):
        self.uid += 1
        return f"L_{base}_{self.uid}"

    def text(self):
        return "\n".join(self.lines) + "\n"


def srd(a, d, base, nbytes):
    a(f"""
    s_mov_b32 s{d}, s{base}
    s_mov_b32 s{d+1}, s{base+1}
    s_mov_b32 s{d+2}, {nbytes}
    s_mov_b32 s{d+3}, 0x00020000
    """)


def module(kernels, single=False):
    out = [HEADER.rstrip("\n")]
    for k in kernels:
        g, b = k["grid"], k["block"]
        if single:
            out.append(f"; @launch grid=({g},1,1) block=({b},1,1) lds={k['lds']}")
        else:
            out.append(f"; @launch kernel={k['name']} grid=({g},1,1) block=({b},1,1) lds={k['lds']}")
    out.append('.amdgcn_target "amdgcn-amd-amdhsa--gfx950"')
    out.append(".text")
    seen = []
    for k in kernels:
        if k["name"] in seen:
            continue
        seen.append(k["name"])
        out.append(f".globl {k['name']}")
        out.append(".p2align 8")
        out.append(f".type {k['name']},@function")
        out.append(f"{k['name']}:")
        out.append(k["body"].rstrip("\n"))
    out.append('.section .rodata,"a"')
    seen = []
    for k in kernels:
        if k["name"] in seen:
            continue
        seen.append(k["name"])
        v = k.get("vgpr", 256)
        ag = k.get("agpr", 0)
        acc = (v + 3) // 4 * 4
        out.append(".p2align 6")
        out.append(f".amdhsa_kernel {k['name']}")
        out.append(f"  .amdhsa_next_free_vgpr {acc + ag if ag else v}")
        out.append(f"  .amdhsa_next_free_sgpr {k.get('sgpr', 102)}")
        out.append(f"  .amdhsa_accum_offset {acc}")
        out.append("  .amdhsa_group_segment_fixed_size 0")
        out.append("  .amdhsa_kernarg_size 128")
        out.append("  .amdhsa_user_sgpr_count 2")
        out.append("  .amdhsa_user_sgpr_kernarg_segment_ptr 1")
        out.append("  .amdhsa_system_sgpr_workgroup_id_x 1")
        out.append(".end_amdhsa_kernel")
    return "\n".join(out) + "\n"
```

```python
import re

TRANS = ("v_exp_f32", "v_log_f32", "v_rcp_f32", "v_rsq_f32", "v_sqrt_f32", "v_sin_f32", "v_cos_f32")
NO_DST_S = ("s_cmp", "s_waitcnt", "s_branch", "s_cbranch", "s_barrier", "s_nop", "s_endpgm", "s_sleep",
            "s_setprio", "s_bitcmp", "s_set_gpr_idx", "s_setpc")


def regs_of(op):
    op = op.strip().lstrip("-").strip("|")
    m = re.fullmatch(r"([vas])\[(\d+):(\d+)\]", op)
    if m:
        return {(m.group(1), i) for i in range(int(m.group(2)), int(m.group(3)) + 1)}
    m = re.fullmatch(r"([vas])(\d+)", op)
    if m:
        return {(m.group(1), int(m.group(2)))}
    if op in ("vcc", "vcc_lo", "vcc_hi"):
        return {("s", "vcc")}
    if op in ("exec", "exec_lo", "exec_hi"):
        return {("s", "exec")}
    if op == "m0":
        return {("s", "m0")}
    return set()


class Ins:
    def __init__(self, text):
        self.text = text
        t = text.split(";")[0].strip()
        self.label = t[:-1] if t.endswith(":") else None
        self.defs, self.uses = set(), set()
        self.kind = "label" if self.label else None
        self.srcc, self.ab, self.data = set(), set(), set()
        self.ws = 0 if self.label else 1
        self.mn = ""
        if self.label or t.startswith("."):
            self.ws = 0
            self.kind = self.kind or "dir"
            return
        p = t.split(None, 1)
        self.mn = mn = p[0]
        rest = p[1] if len(p) > 1 else ""
        ops = [o.strip() for o in re.split(r",(?![^\[]*\])", rest)] if rest else []
        mods = ""
        if ops:
            q = ops[-1].split(None, 1)
            if len(q) > 1 and not ops[-1].startswith("hwreg"):
                ops[-1], mods = q[0], q[1]
        self.mods = mods
        R = [regs_of(o) for o in ops]
        U = lambda l: set().union(*l) if l else set()
        if mn.startswith("v_mfma"):
            self.kind = "mfma"
            self.defs = R[0]; self.ab = R[1] | R[2]; self.srcc = R[3]; self.uses = self.ab | self.srcc
            self.passes = 8 if "32x32" in mn else 4
        elif mn.startswith("v_"):
            self.kind = "valu"
            self.defs = set(R[0]); self.uses = U(R[1:])
            if "_co_" in mn:
                self.defs |= R[1]
            if mn.startswith("v_cmpx"):
                self.defs |= {("s", "exec")}
            if mn.startswith(("v_fmac", "v_mac", "v_dot2c", "v_writelane")) or "d16" in mn or "dpp" in mn or "row_" in mods or "quad_perm" in mods:
                self.uses |= R[0]
            if mn.startswith("v_permlane"):
                self.defs |= R[1]; self.uses |= R[0]
            if mn.startswith("v_cndmask") and len(ops) == 3:
                self.uses |= {("s", "vcc")}
        elif mn.startswith("ds_"):
            self.kind = "ds"
            if mn.startswith(("ds_read", "ds_bpermute", "ds_permute", "ds_swizzle")):
                self.defs = R[0]; self.uses = U(R[1:])
            else:
                self.uses = U(R)
        elif mn.startswith(("buffer_", "global_")):
            self.kind = "vmem"
            self.lds = bool(re.search(r"\blds\b", mods))
            if "_load" in mn and not self.lds:
                self.defs = R[0]; self.uses = U(R[1:])
            else:
                self.uses = U(R)
                if "store_dwordx3" in mn or "store_dwordx4" in mn:
                    self.data = R[0] if mn.startswith("buffer_") else R[1]
        elif mn.startswith("s_"):
            self.kind = "salu"
            if mn == "s_nop":
                self.ws = int(ops[0]) + 1
            if mn.startswith(NO_DST_S):
                self.uses = U(R)
            else:
                self.defs = set(R[0]) if R else set(); self.uses = U(R[1:])
                if "saveexec" in mn:
                    self.defs |= {("s", "exec")}
            self.target = ops[0] if mn.startswith(("s_branch", "s_cbranch")) else None
        else:
            raise ValueError("unknown instruction: " + text)

    def dpp(self):
        return self.kind == "valu" and ("row_" in self.mods or "quad_perm" in self.mods or "dpp" in self.mn)


def need(p, c):
    n = 0
    vg = lambda s: {r for r in s if r[0] in "va"}
    sg = lambda s: {r for r in s if r[0] == "s"}
    if p.kind == "valu":
        dl = p.mn.startswith("v_dot")
        if c.kind == "mfma" and vg(p.defs) & c.uses:
            n = max(n, 3 if dl else 2)
        if c.kind == "mfma" and ("s", "exec") in p.defs:
            n = max(n, 4)
        if c.kind == "vmem" and sg(p.defs) & c.uses:
            n = max(n, 5)
        if c.kind == "valu":
            if sg(p.defs) & c.uses:
                n = max(n, 4 if c.mn.startswith(("v_readlane", "v_writelane")) else 2)
            if vg(p.defs) & c.uses:
                if c.dpp() or c.mn.startswith("v_permlane"):
                    n = max(n, 2)
                if c.mn.startswith(("v_readlane", "v_readfirstlane")):
                    n = max(n, 1)
                if p.mn.startswith(TRANS):
                    n = max(n, 1)
            if ("op_sel" in p.mods and not p.mn.startswith("v_pk")) or "sdwa" in p.mn or "dst_sel" in p.mods:
                if vg(p.defs) & (c.uses | c.defs):
                    n = max(n, 1)
            if ("s", "exec") in p.defs:
                if c.dpp():
                    n = max(n, 5)
                if c.mn.startswith(("v_readlane", "v_readfirstlane", "v_writelane", "v_permlane")):
                    n = max(n, 4)
        if dl and c.kind in ("valu", "ds", "vmem") and vg(p.defs) & (c.uses | c.defs):
            same_acc = c.mn == p.mn and c.kind == "valu" and not (vg(p.defs) & (c.uses - c.defs))
            if not same_acc:
                n = max(n, 3)
        if p.mn.startswith(TRANS) and c.kind in ("ds", "vmem") and vg(p.defs) & c.uses:
            n = max(n, 1)
    if p.kind == "vmem" and p.data and (p.data & c.defs):
        n = max(n, 2 if c.kind in ("valu", "mfma") else 1)
    if p.kind == "salu" and ("s", "m0") in p.defs and c.kind == "vmem" and getattr(c, "lds", False):
        n = max(n, 1)
    if p.kind == "mfma":
        big = 12 if p.passes == 8 else 8
        if c.kind == "mfma":
            if p.defs & c.ab:
                n = max(n, big)
            if p.defs & c.srcc and not (p.defs == c.srcc and p.passes == c.passes):
                n = max(n, big - 2)
            if p.defs & c.defs and not (p.defs == c.srcc and p.passes == c.passes):
                n = max(n, big - 2)
        elif c.kind in ("valu", "ds", "vmem"):
            if p.defs & (c.uses | c.defs):
                n = max(n, big)
            if c.kind == "valu" and p.srcc & c.defs:
                n = max(n, 7 if p.passes == 8 else 3)
    return n


def fix(lines, verbose=False):
    ins = [Ins(l) for l in lines]
    changed, total = True, 0
    while changed:
        changed = False
        lab = {x.label: i for i, x in enumerate(ins) if x.label}
        br = {}
        for i, x in enumerate(ins):
            if x.kind == "salu" and x.target in lab:
                br.setdefault(lab[x.target], []).append(i)
        for i, c in enumerate(ins):
            if c.kind in ("label", "dir", "salu"):
                continue
            worst = 0
            stack, seen = [(i, 0)], {}
            while stack:
                j, d = stack.pop()
                preds = []
                if j > 0 and ins[j - 1].mn not in ("s_branch", "s_endpgm", "s_setpc_b64"):
                    preds.append(j - 1)
                preds += br.get(j, [])
                for k in preds:
                    if seen.get(k, 99) <= d:
                        continue
                    seen[k] = d
                    p = ins[k]
                    w = need(p, c) - d
                    if w > worst:
                        worst, who = w, p
                    if d + p.ws < 12:
                        stack.append((k, d + p.ws))
            if worst > 0:
                if verbose:
                    print(f"nop {worst}: [{who.text.strip()}] -> [{c.text.strip()}]")
                ins.insert(i, Ins(f"    s_nop {worst - 1}"))
                total += worst
                changed = True
                break
    return [x.text for x in ins], total
```

```python
import sys
sys.path.insert(0, "work")
from asmlib import *
import hazard

WS_UT, UT_ROW = 0, 4224
WS_G = 0x200000
WS_H = 0x400000
WS_A = 0xC00000
WS_F = 0xE00000
WS_DBG = 0xF00000
WS_PROF = 0x1200000
WS_SIZE = 0x1400000
SLOT = 32768
L_STG, STG = 0, 13568
L_UC, UCS = 65024, 4160
L_W2, W2R = 98304, 12
L_KR, KRS = 147456, 4608
L_YP = 0
L_RED, RS = 0, 17408
LOG2E = 0x3FB8AA3B
SPIN = 1 << 15

S_X, S_W1, S_W2, S_WS, S_OUT = 4, 8, 12, 16, 20
S_P = 24
S_LAR, S_AIM, S_CRE, S_CIM, S_LDT, S_DSK = 24, 26, 28, 30, 32, 34
S_B1, S_B2, S_GW, S_DBG = 40, 42, 44, 46
sW, sRB, sFB, sRT, sCB, sP, sROT = 48, 49, 50, 51, 52, 53, 54
sKX, sKW, sM0X, sM0W, sIT, sDA = 55, 56, 57, 58, 59, 60
sT0, sT1, sT2, sT3, sT4, sT5 = 61, 62, 63, 64, 65, 66
sLDT, sDSK = 67, 68
sEX = 70
S_TS = 72


class G:
    def __init__(self, prof=False, dbg=False):
        self.a = Asm()
        self.prof, self.dbg = prof, dbg
        self.nts = 0

    def ts(self):
        if self.prof:
            r = S_TS + 2 * self.nts
            assert r < 101
            self.a(f"s_memtime s[{r}:{r+1}]")
            self.nts += 1

    def poll(self, name, vaddr, vtmp, load):
        a = self.a
        a(f"""
        s_mov_b32 s{sT0}, 0
        L_{name}:
        {load}
        s_waitcnt vmcnt(0)
        v_cmp_ne_u32 vcc, 0, v{vtmp}
        s_add_u32 s{sT0}, s{sT0}, 1
        s_cmp_eq_u64 vcc, -1
        s_cbranch_scc1 L_{name}_ok
        s_cmp_lt_u32 s{sT0}, {SPIN}
        s_cbranch_scc1 L_{name}
        L_{name}_ok:
        """)

    def prologue(self):
        a = self.a
        a(f"""
        s_cmp_ge_u32 s2, 256
        s_cbranch_scc1 L_end
        """)
        self.ts()
        a(f"""
        s_load_dwordx2 s[{S_X}:{S_X+1}], s[0:1], 0
        s_load_dwordx2 s[{S_W1}:{S_W1+1}], s[0:1], 64
        s_load_dwordx2 s[{S_WS}:{S_WS+1}], s[0:1], 120
        s_load_dwordx2 s[{S_W2}:{S_W2+1}], s[0:1], 80
        s_load_dwordx2 s[{S_OUT}:{S_OUT+1}], s[0:1], 104
        s_load_dwordx8 s[{S_P}:{S_P+7}], s[0:1], 8
        s_load_dwordx4 s[{S_P+8}:{S_P+11}], s[0:1], 40
        s_load_dwordx2 s[{S_B1}:{S_B1+1}], s[0:1], 72
        s_load_dwordx2 s[{S_B2}:{S_B2+1}], s[0:1], 88
        s_load_dwordx2 s[{S_GW}:{S_GW+1}], s[0:1], 96
        s_load_dwordx2 s[{S_DBG}:{S_DBG+1}], s[0:1], 112
        s_mov_b32 s{S_X+2}, {2048*896}
        s_mov_b32 s{S_X+3}, 0x00020000
        s_mov_b32 s{S_W1+2}, {448*3584}
        s_mov_b32 s{S_W1+3}, 0x00020000
        s_mov_b32 s{S_W2+2}, {1792*896}
        s_mov_b32 s{S_W2+3}, 0x00020000
        s_mov_b32 s{S_WS+2}, {WS_SIZE}
        s_mov_b32 s{S_WS+3}, 0x00020000
        s_mov_b32 s{S_OUT+2}, {2048*896}
        s_mov_b32 s{S_OUT+3}, 0x00020000
        v_lshrrev_b32 v2, 6, v0
        v_and_b32 v1, 63, v0
        v_readfirstlane_b32 s{sW}, v2
        s_cmp_lt_u32 s2, 32
        s_cbranch_scc1 L_spare
        """)

    def main(self):
        a = self.a
        XD, WD, XR, WR = 4, 8, 12, 16
        PAR = 18
        BI = 22
        ACC = 64
        FB0 = 32
        a(f"""
        s_and_b32 s{sT0}, s2, 7
        s_lshr_b32 s{sT1}, s2, 3
        s_sub_u32 s{sT1}, s{sT1}, 4
        s_mul_i32 s{sT2}, s{sT1}, 37
        s_lshr_b32 s{sT2}, s{sT2}, 8
        s_mul_i32 s{sT3}, s{sT2}, 7
        s_sub_u32 s{sCB}, s{sT1}, s{sT3}
        s_lshr_b32 s{sT3}, s{sT0}, 1
        s_lshl2_add_u32 s{sRB}, s{sT3}, s{sT2}
        s_and_b32 s{sT3}, s{sT0}, 1
        s_mul_i32 s{sT3}, s{sT3}, 7
        s_add_u32 s{sFB}, s{sT3}, s{sCB}
        s_lshl2_add_u32 s{sRT}, s{sT0}, s{sT2}
        s_sub_u32 s{sP}, s2, 32
        s_lshl1_add_u32 s{sROT}, s{sT2}, s{sCB}
        s_cmp_ge_u32 s{sROT}, 7
        s_cselect_b32 s{sT3}, 7, 0
        s_sub_u32 s{sROT}, s{sROT}, s{sT3}
        s_lshl_b32 s{sKX}, s{sROT}, 7
        s_mul_i32 s{sKW}, s{sROT}, {64*3584}
        s_lshl_b32 s{sM0X}, s{sW}, 12
        """)
        a(f"""
        v_lshrrev_b32 v2, 3, v1
        v_lshrrev_b32 v3, 4, v1
        v_and_b32 v32, 7, v1
        v_xor_b32 v32, v32, v3
        s_lshl_b32 s{sT0}, s{sRB}, 2
        s_add_u32 s{sT0}, s{sT0}, s{sW}
        s_mul_i32 s{sT0}, s{sT0}, {32*896}
        v_mul_u32_u24 v2, 896, v2
        v_add_u32 v2, s{sT0}, v2
        v_lshl_add_u32 v{XD}, v32, 4, v2
        v_xor_b32 v32, 4, v32
        v_lshl_add_u32 v{XD+1}, v32, 4, v2
        v_add_u32 v{XD+1}, {7168-1024}, v{XD+1}
        v_add_u32 v{XD+2}, {2*(7168-1024)}, v{XD}
        v_add_u32 v{XD+3}, {2*(7168-1024)}, v{XD+1}
        v_and_b32 v32, 15, v1
        v_lshlrev_b32 v33, 2, v3
        v_xor_b32 v32, v32, v33
        s_mul_i32 s{sT0}, s{sW}, {16*3584}
        s_lshl_b32 s{sT1}, s{sFB}, 8
        s_add_u32 s{sT0}, s{sT0}, s{sT1}
        v_mul_u32_u24 v3, 3584, v3
        v_add_u32 v3, s{sT0}, v3
        v_lshl_add_u32 v{WD}, v32, 4, v3
        v_add_u32 v{WD+1}, {4*3584-1024}, v{WD}
        v_add_u32 v{WD+2}, {2*(4*3584-1024)}, v{WD}
        v_add_u32 v{WD+3}, {3*(4*3584-1024)}, v{WD}
        s_waitcnt lgkmcnt(0)
        """)
        self.ts()

        def dma_x(i):
            return f"buffer_load_dwordx4 v{XD+i}, s[{S_X}:{S_X+3}], s{sKX} offen offset:{1024*i} lds"

        def dma_w(i):
            return f"buffer_load_dwordx4 v{WD+i}, s[{S_W1}:{S_W1+3}], s{sKW} offen offset:{1024*i} lds"

        def adv_k():
            return [f"s_add_u32 s{sKX}, s{sKX}, 128",
                    f"s_add_u32 s{sKW}, s{sKW}, {64*3584}",
                    f"s_cmp_eq_u32 s{sKX}, 896",
                    f"s_cselect_b32 s{sKX}, 0, s{sKX}",
                    f"s_cselect_b32 s{sKW}, 0, s{sKW}",
                    f"s_add_u32 s{sM0X}, s{sM0X}, {SLOT}",
                    f"s_cmp_ge_u32 s{sM0X}, {3*SLOT}",
                    f"s_cselect_b32 s{sT0}, {3*SLOT}, 0",
                    f"s_sub_u32 s{sM0X}, s{sM0X}, s{sT0}"]

        def dma_step():
            return ([f"s_mov_b32 m0, s{sM0X}"] + [dma_x(i) for i in range(4)] +
                    [f"s_add_u32 m0, s{sM0X}, 16384"] + [dma_w(i) for i in range(4)] + adv_k())

        for ln in dma_step():
            a(ln)
        a(f"""
        s_lshl_b32 s{sT0}, s{sP}, 2
        s_load_dword s{sLDT}, s[{S_LDT}:{S_LDT+1}], s{sT0}
        s_load_dword s{sDSK}, s[{S_DSK}:{S_DSK+1}], s{sT0}
        s_lshl_b32 s{sT0}, s{sFB}, 8
        s_lshr_b32 s{sT1}, s{sW}, 1
        s_lshl_b32 s{sT1}, s{sT1}, 7
        s_add_u32 s{sT0}, s{sT0}, s{sT1}
        v_and_b32 v2, 31, v1
        v_lshl_add_u32 v3, v2, 1, s{sT0}
        global_load_ushort v{BI}, v3, s[{S_B1}:{S_B1+1}]
        global_load_ushort v{BI+2}, v3, s[{S_B1}:{S_B1+1}] offset:64
        s_lshl_b32 s{sT0}, s{sP}, 10
        v_lshl_add_u32 v3, v0, 2, s{sT0}
        global_load_dword v{PAR}, v3, s[{S_LAR}:{S_LAR+1}]
        global_load_dword v{PAR+1}, v3, s[{S_AIM}:{S_AIM+1}]
        global_load_dword v{PAR+2}, v3, s[{S_CRE}:{S_CRE+1}]
        global_load_dword v{PAR+3}, v3, s[{S_CIM}:{S_CIM+1}]
        """)
        for ln in dma_step():
            a(ln)
        a(f"""
        v_lshrrev_b32 v3, 5, v1
        v_bfe_u32 v32, v1, 1, 3
        v_xor_b32 v32, v32, v3
        s_and_b32 s{sT0}, s{sW}, 1
        s_lshl_b32 s{sT0}, s{sT0}, 13
        v_lshl_add_u32 v33, v2, 7, s{sT0}
        v_lshl_add_u32 v{XR}, v32, 4, v33
        v_xor_b32 v{XR+1}, 32, v{XR}
        v_xor_b32 v{XR+2}, 64, v{XR}
        v_xor_b32 v{XR+3}, 96, v{XR}
        v_bfe_u32 v32, v1, 2, 2
        v_lshl_add_u32 v33, v3, 3, v32
        v_lshlrev_b32 v33, 8, v33
        s_and_b32 s{sT0}, s{sW}, 2
        v_xor_b32 v32, s{sT0}, v32
        v_lshl_add_u32 v33, v32, 6, v33
        v_bfe_u32 v32, v1, 4, 1
        v_lshl_add_u32 v33, v32, 5, v33
        v_and_b32 v32, 3, v1
        v_lshl_add_u32 v33, v32, 3, v33
        v_add_u32 v{WR}, 16384, v33
        v_xor_b32 v{WR+1}, 64, v{WR}
        v_mov_b32 v{BI+1}, 0
        v_mov_b32 v{BI+3}, 0
        v_mov_b32 v{BI+4}, 0
        v_mov_b32 v{BI+5}, 0
        v_sub_u32 v{BI+6}, 1, v3
        v_mul_u32_u24 v{BI+6}, 0x3f80, v{BI+6}
        v_mov_b32 v{BI+7}, 0
        v_mov_b32 v{BI+8}, 0
        v_mov_b32 v{BI+9}, 0
        s_mov_b32 s{sIT}, 0
        s_mov_b32 s{sDA}, 0
        s_waitcnt vmcnt(8) lgkmcnt(0)
        s_barrier
        """)
        self.ts()

        def acc(ft, tt):
            r = ACC + 16 * (2 * ft + tt)
            return f"v[{r}:{r+15}]"

        def reads(s):
            b = FB0 + 16 * (s & 1)
            out = []
            for ft in range(2):
                for z in range(2):
                    r = b + 4 * ft + 2 * z
                    out.append(f"ds_read_b64_tr_b16 v[{r}:{r+1}], v{WR+ft} offset:{(16*s+4*z)*256}")
            for tt in range(2):
                r = b + 8 + 4 * tt
                out.append(f"ds_read_b128 v[{r}:{r+3}], v{XR+s} offset:{4096*tt}")
            return [out[0], out[1], out[4], out[5], out[2], out[3]]

        def mfmas(s):
            b = FB0 + 16 * (s & 1)
            return [f"v_mfma_f32_32x32x16_bf16 {acc(ft,tt)}, v[{b+4*ft}:{b+4*ft+3}], v[{b+8+4*tt}:{b+8+4*tt+3}], {acc(ft,tt)}"
                    for ft in range(2) for tt in range(2)]

        for ln in reads(0):
            a(ln)
        for ft in range(2):
            for tt in range(2):
                a(f"v_mfma_f32_32x32x16_bf16 {acc(ft,tt)}, v[{BI+2*ft}:{BI+2*ft+3}], v[{BI+6}:{BI+9}], 0")

        def body(dma, last):
            fill = dma_step() if dma else []
            chunks = [fill[0:3], fill[3:5], fill[5:8], fill[8:10], fill[10:]]
            for s in range(3):
                rd, mf = reads(s + 1), mfmas(s)
                a(rd[0]); a(rd[1]); a(rd[2])
                a("s_waitcnt lgkmcnt(3)")
                a(mf[0]); a(rd[3]); a(rd[4]); a(rd[5])
                a(mf[1])
                for ln in chunks[2 * s]:
                    a(ln)
                a(mf[2])
                if 2 * s + 1 < 5:
                    for ln in chunks[2 * s + 1]:
                        a(ln)
                a(mf[3])
            mf = mfmas(3)
            if last:
                a("s_waitcnt lgkmcnt(0)")
                for m in mf:
                    a(m)
                return
            a(f"""
            s_add_u32 s{sDA}, s{sDA}, 1
            s_cmp_eq_u32 s{sDA}, 3
            s_cselect_b32 s{sDA}, 0, s{sDA}
            s_cselect_b32 s{sT1}, {(-2*SLOT) & 0xffffffff}, {SLOT}
            """ if False else f"""
            s_add_u32 s{sDA}, s{sDA}, 1
            s_cmp_eq_u32 s{sDA}, 3
            s_cselect_b32 s{sDA}, 0, s{sDA}
            s_cselect_b32 s{sT1}, -2, 1
            s_lshl_b32 s{sT1}, s{sT1}, 15
            """)
            for r in list(range(XR, XR + 4)) + [WR, WR + 1]:
                a(f"v_add_u32 v{r}, s{sT1}, v{r}")
            a(f"s_waitcnt vmcnt({8 if dma else 0}) lgkmcnt(0)")
            a("s_barrier")
            rd = reads(0)
            a(rd[0]); a(rd[1]); a(rd[2])
            a(mf[0]); a(rd[3]); a(rd[4]); a(rd[5])
            a(mf[1]); a(mf[2]); a(mf[3])

        a("L_g1:")
        body(True, False)
        a(f"""
        s_add_u32 s{sIT}, s{sIT}, 1
        s_cmp_lt_u32 s{sIT}, 5
        s_cbranch_scc1 L_g1
        """)
        body(False, False)
        body(False, True)
        self.ts()

        a(f"""
        v_and_b32 v2, 31, v1
        v_lshlrev_b32 v2, 2, v2
        """)
        self.poll("pu", 2, 3, f"global_load_dword v3, v2, s[{S_DBG}:{S_DBG+1}] sc1")
        a(f"""
        v_lshlrev_b32 v2, 4, v1
        s_lshr_b32 s{sT0}, s{sW}, 1
        s_lshl1_add_u32 s{sT0}, s{sP}, s{sT0}
        s_mul_i32 s{sT0}, s{sT0}, {UT_ROW}
        s_and_b32 s{sT1}, s{sW}, 1
        s_lshl2_add_u32 s{sT0}, s{sT1}, s{sT0}
        s_add_u32 s{sT0}, s{sT0}, {WS_UT + 128 - 6}
        s_mul_i32 s{sT1}, s{sW}, {2*UCS}
        s_add_u32 m0, s{sT1}, {L_UC + 64}
        """)
        for i in range(4):
            a(f"buffer_load_dwordx4 v2, s[{S_WS}:{S_WS+3}], s{sT0} offen offset:{1024*i} sc1 lds")
        a(f"""
        s_add_u32 s{sT0}, s{sT0}, 2
        s_add_u32 m0, s{sT1}, {L_UC + 64 + UCS}
        """)
        for i in range(4):
            a(f"buffer_load_dwordx4 v2, s[{S_WS}:{S_WS+3}], s{sT0} offen offset:{1024*i} sc1 lds")

        a(f"""
        s_and_b32 s{sT0}, s{sW}, 1
        s_lshl1_add_u32 s{sT0}, s{sRB}, s{sT0}
        s_mul_i32 s{sT0}, s{sT0}, 224
        s_lshl3_add_u32 s{sT0}, s{sFB}, s{sT0}
        s_and_b32 s{sT1}, s{sW}, 2
        s_lshl1_add_u32 s{sT0}, s{sT1}, s{sT0}
        s_lshl_b32 s{sT0}, s{sT0}, 10
        s_add_u32 s{sT0}, s{sT0}, {WS_H}
        s_add_u32 s{sT1}, s{sT0}, {112*1024}
        """)
        for ft in range(2):
            for tt in range(2):
                r0 = ACC + 16 * (2 * ft + tt)
                o = FB0 + 8 * (2 * ft + tt)
                for r in range(16):
                    a(f"v_max_f32 v{r0+r}, 0, v{r0+r}")
                for r in range(0, 16, 2):
                    a(f"v_pk_mul_f32 v[{r0+r}:{r0+r+1}], v[{r0+r}:{r0+r+1}], v[{r0+r}:{r0+r+1}]")
                for r in range(0, 16, 2):
                    a(f"v_cvt_pk_bf16_f32 v{o+r//2}, v{r0+r}, v{r0+r+1}")
                for z in range(2):
                    a(f"buffer_store_dwordx4 v[{o+4*z}:{o+4*z+3}], v2, s[{S_WS}:{S_WS+3}], s{sT0+tt} offen offset:{(2*ft+z)*1024} sc1")
        a("s_barrier")
        self.ts()
        self.kgen(PAR)
        self.ts()
        a(f"""
        s_lshl_b32 s{sT0}, s{sRB}, 5
        s_add_u32 s{sT0}, s{sT0}, s{sFB}
        s_lshl_b32 s{sT0}, s{sT0}, 2
        s_add_u32 s{sT0}, s{sT0}, {WS_F}
        s_cmp_lg_u32 s{sW}, 0
        s_cbranch_scc1 L_nohf
        v_mov_b32 v2, 0
        v_mov_b32 v3, 1
        s_mov_b64 exec, 1
        buffer_store_dword v3, v2, s[{S_WS}:{S_WS+3}], s{sT0} offen sc1
        s_mov_b64 exec, -1
        L_nohf:
        """)
        self.conv()
        self.ts()
        self.w2load()
        self.ts()
        self.gemm2()

    def kgen(self, PAR):
        a = self.a
        KA = 128
        W1, W8, W256 = 4, 6, 8
        DT, WA, RA = 10, 11, 12
        Z = 32
        a(f"""
        s_lshr_b32 s{sT0}, s{sW}, 1
        s_lshl_b32 s{sT0}, s{sT0}, 4
        s_lshr_b32 s{sT1}, s{sLDT}, s{sT0}
        s_lshl_b32 s{sT1}, s{sT1}, 16
        s_mov_b32 s{sT2}, {LOG2E}
        v_mov_b32 v2, s{sT1}
        v_mul_f32 v3, s{sT2}, v2
        v_fma_f32 v13, v2, s{sT2}, -v3
        v_fmac_f32 v13, 0x32a57060, v2
        v_exp_f32 v3, v3
        v_mul_f32 v13, 0x3f317218, v13
        v_fmac_f32 v3, v3, v13
        v_cvt_pk_bf16_f32 v3, v3, v3
        v_lshlrev_b32 v{DT}, 16, v3
        s_mul_i32 s{sT0}, s{sW}, {STG}
        v_lshrrev_b32 v2, 2, v1
        v_mul_u32_u24 v2, 848, v2
        v_and_b32 v3, 3, v1
        v_lshl_add_u32 v2, v3, 2, v2
        v_add_u32 v{WA}, s{sT0}, v2
        v_lshrrev_b32 v2, 5, v1
        v_mul_u32_u24 v2, 848, v2
        v_and_b32 v3, 31, v1
        v_lshl_add_u32 v2, v3, 4, v2
        v_add_u32 v{RA}, s{sT0}, v2
        s_mov_b32 s{sIT}, 0
        """)
        for r in range(16):
            a(f"v_mov_b32 v{KA+r}, 0")
        a("L_kg:")
        a(f"""
        v_lshlrev_b32 v2, 16, v{PAR}
        v_lshlrev_b32 v3, 16, v{PAR+1}
        v_mul_f32 v2, s{sT2}, v2
        v_exp_f32 v2, v2
        v_mul_f32 v3, v3, v{DT}
        v_mul_f32 v3, 0.15915494, v3
        v_cvt_pk_bf16_f32 v2, v2, v2
        v_lshlrev_b32 v2, 16, v2
        v_mul_f32 v2, v2, v{DT}
        v_mul_f32 v2, s{sT2}, v2
        """)
        for (w, sc) in ((W1, None), (W8, 0x41000000), (W256, 0x43800000)):
            if sc is None:
                a(f"""
                v_exp_f32 v13, -v2
                v_fract_f32 v14, v3
                """)
            else:
                a(f"""
                v_mul_f32 v13, {hex(sc)}, v2
                v_mul_f32 v14, {hex(sc)}, v3
                v_exp_f32 v13, -v13
                v_fract_f32 v14, v14
                """)
            a(f"""
            v_cos_f32 v{w}, v14
            v_sin_f32 v{w+1}, v14
            v_mul_f32 v{w}, v{w}, v13
            v_mul_f32 v{w+1}, v{w+1}, v13
            """)
        H = Z
        L = Z + 42
        PK = Z + 46
        a(f"""
        v_add_f32 v13, v{DT}, v{DT}
        v_lshlrev_b32 v{H}, 16, v{PAR+2}
        v_lshlrev_b32 v{H+1}, 16, v{PAR+3}
        v_mul_f32 v{H}, v{H}, v13
        v_mul_f32 v{H+1}, v{H+1}, v13
        v_lshrrev_b32 v{PAR}, 16, v{PAR}
        v_lshrrev_b32 v{PAR+1}, 16, v{PAR+1}
        v_lshrrev_b32 v{PAR+2}, 16, v{PAR+2}
        v_lshrrev_b32 v{PAR+3}, 16, v{PAR+3}
        """)

        def cmul(d, z, w):
            return [f"v_pk_mul_f32 v[{d}:{d+1}], v[{z}:{z+1}], v[{w}:{w+1}] op_sel:[0,0] op_sel_hi:[1,0]",
                    f"v_pk_fma_f32 v[{d}:{d+1}], v[{z}:{z+1}], v[{w}:{w+1}], v[{d}:{d+1}] op_sel:[1,1,0] op_sel_hi:[0,1,1] neg_lo:[1,0,0]"]

        hsrc = {i: (i - 1, W1) for i in range(1, 8)}
        hsrc.update({8: (0, W256), 9: (2, W256), 10: (4, W256), 11: (6, W256), 12: (8, W256), 13: (10, W256),
                     14: (12, W256), 15: (13, W256), 16: (14, W256), 17: (16, W256), 18: (17, W256),
                     19: (18, W256), 20: (19, W256)})
        hs, ls = [], []
        for i in range(21):
            st = []
            if i:
                st += cmul(H + 2 * i, H + 2 * hsrc[i][0], hsrc[i][1])
            st.append(f"v_cvt_pk_bf16_f32 v{PK + 2 + (i & 1)}, v{H+2*i}, -v{H+2*i+1}")
            if i & 1:
                st.append(f"ds_write2_b32 v{WA}, v{PK+2}, v{PK+3} offset0:{4*(32+i-1)} offset1:{4*(32+i)}")
            elif i == 20:
                st.append(f"ds_write_b32 v{WA}, v{PK+2} offset:{16*52}")
            hs.append(st)
        for j in range(32):
            st = []
            if j == 0:
                st.append(f"v_mov_b32 v{PK}, 0x3f80")
            elif j == 1:
                st.append(f"v_cvt_pk_bf16_f32 v{PK+1}, v{W8}, v{W8+1}")
            else:
                src = W8 if j == 2 else L + 2 * ((j - 1) & 1)
                st += cmul(L + 2 * (j & 1), src, W8)
                st.append(f"v_cvt_pk_bf16_f32 v{PK + (j & 1)}, v{L+2*(j&1)}, v{L+2*(j&1)+1}")
            if j & 1:
                st.append(f"ds_write2_b32 v{WA}, v{PK}, v{PK+1} offset0:{4*(j-1)} offset1:{4*j}")
            ls.append(st)
        fl = [x for st in ls for x in st]
        fh = [x for st in hs for x in st]
        i = j = 0
        while i < len(fl) or j < len(fh):
            if j >= len(fh) or (i < len(fl) and i * len(fh) <= j * len(fl)):
                a(fl[i]); i += 1
            else:
                a(fh[j]); j += 1
        a("s_waitcnt lgkmcnt(0)")
        FR = 32
        for s in range(8):
            a(f"ds_read_b128 v[{FR+8*s}:{FR+8*s+3}], v{RA} offset:{1696*s}")
            a(f"ds_read_b128 v[{FR+8*s+4}:{FR+8*s+7}], v{RA} offset:{1696*s+512}")
        for s in range(8):
            a(f"s_waitcnt lgkmcnt({14-2*s})")
            a(f"v_mfma_f32_32x32x16_bf16 v[{KA}:{KA+15}], v[{FR+8*s}:{FR+8*s+3}], v[{FR+8*s+4}:{FR+8*s+7}], v[{KA}:{KA+15}]")
        a(f"""
        s_add_u32 s{sIT}, s{sIT}, 1
        s_cmp_lt_u32 s{sIT}, 2
        s_cbranch_scc1 L_kg
        """)
        GA = 32
        a(f"""
        v_and_b32 v2, 31, v1
        v_and_b32 v3, 7, v1
        v_lshlrev_b32 v4, 1, v3
        v_add_u32 v4, 264, v4
        v_bfe_u32 v5, v1, 1, 1
        v_mul_u32_u24 v5, 264, v5
        v_and_b32 v6, 1, v1
        v_lshl_add_u32 v5, v6, 2, v5
        v_add_u32 v5, 528, v5
        v_mul_u32_u24 v6, 264, v3
        v_add_u32 v6, 1056, v6
        v_cmp_lt_u32 vcc, 7, v2
        v_cndmask_b32 v3, v3, v4, vcc
        v_cmp_lt_u32 vcc, 11, v2
        v_cndmask_b32 v3, v3, v5, vcc
        v_cmp_lt_u32 vcc, 15, v2
        v_cndmask_b32 v3, v3, v6, vcc
        v_lshrrev_b32 v4, 5, v1
        v_lshl_add_u32 v3, v4, 5, v3
        v_lshl_add_u32 v3, v3, 2, s{sT0}
        v_lshlrev_b32 v4, 3, v0
        v_sub_u32 v4, {4*2047}, v4
        v_cvt_f32_u32 v4, v4
        """)
        for i in range(4):
            import struct
            f0 = struct.unpack("<I", struct.pack("<f", -2048.0 * i))[0]
            f1 = struct.unpack("<I", struct.pack("<f", -2048.0 * i - 4))[0]
            g0, g1 = GA + 2 * i, GA + 2 * i + 1
            a(f"""
            v_add_f32 v5, {hex(f0)}, v4
            v_add_f32 v6, {hex(f1)}, v4
            v_cvt_pk_bf16_f32 v5, v5, v6
            v_and_b32 v6, 0xffff0000, v5
            v_lshlrev_b32 v5, 16, v5
            v_cvt_u32_f32 v5, v5
            v_cvt_u32_f32 v6, v6
            v_lshrrev_b32 v{g0}, 10, v5
            v_lshrrev_b32 v{g1}, 10, v6
            v_lshl_add_u32 v{g0}, v{g0}, 5, v5
            v_lshl_add_u32 v{g1}, v{g1}, 5, v6
            """)
        a(f"""
        v_cmp_gt_u32 vcc, 21, v2
        s_and_saveexec_b64 s[{sEX}:{sEX+1}], vcc
        """)
        for r in range(0, 16, 2):
            o = lambda r: 8 * (8 * (r >> 2) + (r & 3))
            a(f"ds_write2_b32 v3, v{KA+r}, v{KA+r+1} offset0:{o(r)} offset1:{o(r+1)}")
        a(f"""
        s_mov_b64 exec, -1
        v_mov_b32 v4, 0
        v_mov_b32 v5, 0
        v_mov_b32 v6, 0
        v_mov_b32 v7, 0
        v_lshrrev_b32 v8, 3, v1
        v_mul_u32_u24 v8, {UCS}, v8
        v_and_b32 v9, 7, v1
        v_lshl_add_u32 v8, v9, 3, v8
        ds_write_b64 v8, v[4:5] offset:{L_UC}
        v_lshrrev_b32 v8, 5, v1
        v_mul_u32_u24 v8, {KRS}, v8
        v_lshl_add_u32 v8, v2, 4, v8
        v_add_u32 v8, {L_KR + 4096}, v8
        ds_write_b128 v8, v[4:7]
        s_waitcnt lgkmcnt(0)
        s_barrier
        """)
        GV = 48
        for ch in range(2):
            for e in range(8):
                r = GV + 16 * ch + 2 * e
                a(f"ds_read2st64_b32 v[{r}:{r+1}], v{GA+e} offset0:{106*ch} offset1:{106*ch+53}")
        a(f"""
        v_lshlrev_b32 v8, 2, v0
        v_add_u32 v8, {L_KR}, v8
        """)
        for ch in range(2):
            a(f"s_waitcnt lgkmcnt({8 if ch == 0 else 4})")
            for e in range(8):
                r = GV + 16 * ch + 2 * e
                a(f"v_add_f32 v{r}, v{r}, v{r+1}")
            for i in range(4):
                r = GV + 16 * ch + 4 * i
                a(f"v_cvt_pk_bf16_f32 v{r}, v{r}, v{r+2}")
                a(f"ds_write_b32 v8, v{r} offset:{KRS*ch + 1024*i}")
        a(f"""
        s_waitcnt vmcnt(0) lgkmcnt(0)
        s_barrier
        """)
        if self.dbg:
            a(f"""
            v_lshlrev_b32 v8, 4, v0
            v_add_u32 v9, {L_KR}, v8
            ds_read_b128 v[4:7], v9
            ds_read_b128 v[12:15], v9 offset:{KRS}
            s_lshl_b32 s{sT0}, s{sP}, 13
            s_add_u32 s{sT0}, s{sT0}, {WS_DBG}
            s_add_u32 s{sT1}, s{sT0}, 4096
            s_waitcnt lgkmcnt(0)
            buffer_store_dwordx4 v[4:7], v8, s[{S_WS}:{S_WS+3}], s{sT0} offen
            buffer_store_dwordx4 v[12:15], v8, s[{S_WS}:{S_WS+3}], s{sT1} offen
            """)

    def conv(self):
        a = self.a
        TA, PA = 4, 5
        CA = 32
        FT = [64, 128]
        a(f"""
        v_and_b32 v2, 3, v1
        v_mul_u32_u24 v2, {UCS}, v2
        v_and_b32 v3, 12, v1
        v_lshl_add_u32 v2, v3, 1, v2
        v_lshrrev_b32 v3, 4, v1
        v_lshl_add_u32 v2, v3, 4, v2
        s_lshr_b32 s{sT0}, s{sW}, 1
        s_and_b32 s{sT1}, s{sW}, 1
        s_lshl_b32 s{sT1}, s{sT1}, 8
        s_mul_i32 s{sT2}, s{sT0}, {4*UCS}
        s_add_u32 s{sT2}, s{sT2}, s{sT1}
        s_add_u32 s{sT2}, s{sT2}, {L_UC + 64 - 56 + 32}
        v_add_u32 v{TA}, s{sT2}, v2
        s_mul_i32 s{sT2}, s{sT0}, {KRS}
        s_add_u32 s{sT2}, s{sT2}, s{sT1}
        s_add_u32 s{sT2}, s{sT2}, {L_KR + 448 + 32}
        v_and_b32 v2, 15, v1
        v_lshlrev_b32 v2, 5, v2
        v_lshlrev_b32 v3, 4, v3
        v_sub_u32 v2, v3, v2
        v_add_u32 v{PA}, s{sT2}, v2
        """)

        def rd(m, k):
            b = FT[m & 1]
            return [f"ds_read_b64 v[{b+4*k}:{b+4*k+1}], v{TA} offset:{64*m + 512*k}",
                    f"ds_read_b64 v[{b+4*k+2}:{b+4*k+3}], v{TA} offset:{64*m + 512*k + 8}",
                    f"ds_read_b128 v[{b+32+4*k}:{b+32+4*k+3}], v{PA} offset:{64*m + 512*(7-k)}"]

        order = []
        for mx in range(8):
            for x in range(8):
                for y in range(8):
                    if max(x, y) == mx and x + y <= 7:
                        order.append((x, y))
        for k in range(8):
            for ln in rd(0, k):
                a(ln)
        first = set()
        for m in range(4):
            b = FT[m & 1]
            pend = [ln for k in range(8) for ln in rd(m + 1, k)] if m < 3 else []
            a("s_waitcnt lgkmcnt(0)")
            for n, (x, y) in enumerate(order):
                c = x + y
                src = f"v[{CA+4*c}:{CA+4*c+3}]" if c in first else "0"
                first.add(c)
                a(f"v_mfma_f32_16x16x32_bf16 v[{CA+4*c}:{CA+4*c+3}], v[{b+4*x}:{b+4*x+3}], v[{b+32+4*y}:{b+32+4*y+3}], {src}")
                if pend:
                    a(pend.pop(0))
        a(f"""
        v_and_b32 v2, 15, v1
        v_lshl_add_u32 v2, v2, 6, v3
        s_lshl_b32 s{sT0}, s{sW}, 13
        v_add_u32 v2, s{sT0}, v2
        """)
        for c in range(8):
            a(f"ds_write_b128 v2, v[{CA+4*c}:{CA+4*c+3}] offset:{L_YP + 1024*c}")
        a(f"""
        v_lshlrev_b32 v2, 4, v0
        v_lshlrev_b32 v3, 3, v0
        v_add_u32 v3, {L_UC + 64 + 3*UCS}, v3
        s_lshl_b32 s{sT0}, s{sDSK}, 16
        s_and_b32 s{sT1}, s{sDSK}, 0xffff0000
        s_lshl_b32 s{sT2}, s{sP}, 13
        s_add_u32 s{sT2}, s{sT2}, {WS_A}
        s_add_u32 s{sT3}, s{sT2}, 4096
        s_waitcnt lgkmcnt(0)
        s_barrier
        """)
        for z in range(2):
            b = 64 + 32 * z
            for w in range(4):
                a(f"ds_read_b128 v[{b+4*w}:{b+4*w+3}], v2 offset:{L_YP + 8192*w + 4096*z}")
            for ch in range(2):
                a(f"ds_read_b64 v[{b+16+2*ch}:{b+16+2*ch+1}], v3 offset:{4*UCS*ch + 2048*z}")
        for z in range(2):
            b = 64 + 32 * z
            a(f"s_waitcnt lgkmcnt({6 if z == 0 else 0})")
            for ch in range(2):
                for r in range(4):
                    y = b + 8 * ch + r
                    a(f"v_add_f32 v{y}, v{y}, v{y+4}")
                    u = b + 16 + 2 * ch + (r >> 1)
                    a(f"v_lshlrev_b32 v{y+4}, 16, v{u}" if r % 2 == 0 else f"v_and_b32 v{y+4}, 0xffff0000, v{u}")
                    a(f"v_fmac_f32 v{y}, s{sT0+ch}, v{y+4}")
            for r in range(4):
                a(f"v_cvt_pk_bf16_f32 v{b+20+r}, v{b+r}, v{b+8+r}")
            a(f"buffer_store_dwordx4 v[{b+20}:{b+23}], v2, s[{S_WS}:{S_WS+3}], s{sT2+z} offen sc1")
        a(f"""
        s_waitcnt vmcnt(0)
        s_barrier
        s_lshl_b32 s{sT0}, s{sP}, 2
        s_add_u32 s{sT0}, s{sT0}, {WS_F + 16*128}
        s_cmp_lg_u32 s{sW}, 0
        s_cbranch_scc1 L_noaf
        v_mov_b32 v2, 0
        v_mov_b32 v3, 1
        s_mov_b64 exec, 1
        buffer_store_dword v3, v2, s[{S_WS}:{S_WS+3}], s{sT0} offen sc1
        s_mov_b64 exec, -1
        L_noaf:
        """)

    def w2load(self):
        a = self.a
        D, R = 4, 8
        a(f"""
        v_lshrrev_b32 v2, 3, v1
        v_mul_u32_u24 v2, 896, v2
        v_bfe_u32 v3, v1, 4, 1
        v_lshlrev_b32 v3, 2, v3
        v_and_b32 v10, 7, v1
        v_xor_b32 v3, v3, v10
        v_lshl_add_u32 v{D}, v3, 4, v2
        v_add_u32 v{D+1}, {7168-1024}, v{D}
        v_add_u32 v{D+2}, {2*(7168-1024)}, v{D}
        v_add_u32 v{D+3}, {3*(7168-1024)}, v{D}
        v_lshrrev_b32 v2, 5, v1
        v_bfe_u32 v3, v1, 2, 2
        v_lshl_add_u32 v2, v2, 2, v3
        v_lshlrev_b32 v2, 7, v2
        v_bfe_u32 v3, v1, 3, 1
        v_lshl_add_u32 v2, v3, 6, v2
        v_bfe_u32 v3, v1, 4, 1
        v_lshl_add_u32 v2, v3, 5, v2
        v_and_b32 v3, 3, v1
        v_lshl_add_u32 v2, v3, 3, v2
        s_mul_i32 s{sM0W}, s{sW}, {W2R*1024}
        s_add_u32 s{sM0W}, s{sM0W}, {L_W2}
        v_add_u32 v{R}, s{sM0W}, v2
        v_xor_b32 v{R+1}, 64, v{R}
        s_mul_i32 s{sT1}, s{sW}, {448*896}
        s_lshl_b32 s{sT2}, s{sCB}, 7
        s_add_u32 s{sT1}, s{sT1}, s{sT2}
        s_mul_i32 s{sKW}, s{sROT}, {64*896}
        """)

        def issue(q):
            out = [f"s_add_u32 m0, s{sM0W}, {(q % 3) * 4096}",
                   f"s_add_u32 s{sT0}, s{sT1}, s{sKW}"]
            out += [f"buffer_load_dwordx4 v{D+i}, s[{S_W2}:{S_W2+3}], s{sT0} offen offset:{1024*i} lds" for i in range(4)]
            out += [f"s_add_u32 s{sKW}, s{sKW}, {32*896}"]
            if q & 1:
                out += [f"s_cmp_eq_u32 s{sKW}, {448*896}", f"s_cselect_b32 s{sKW}, 0, s{sKW}"]
            return out

        for q in range(3):
            for ln in issue(q):
                a(ln)
        for q in range(14):
            a(f"s_waitcnt vmcnt({4 * min(2, 13 - q)})")
            for kk in range(2):
                for ct in range(2):
                    for z in range(2):
                        r = ((2 * q + kk) * 2 + ct) * 4 + 2 * z
                        a(f"ds_read_b64_tr_b16 a[{r}:{r+1}], v{R+ct} offset:{(q % 3) * 4096 + (2*kk+z) * 1024}")
            if q + 3 < 14:
                a("s_waitcnt lgkmcnt(0)")
                for ln in issue(q + 3):
                    a(ln)

    def gemm2(self):
        a = self.a
        HR, NR = 128, 14
        ACC = 64
        a(f"""
        s_mul_i32 s{sT1}, s{sW}, 7
        s_lshr_b32 s{sT1}, s{sT1}, 1
        s_lshr_b32 s{sT2}, s{sRT}, 1
        s_lshl_b32 s{sT2}, s{sT2}, 5
        s_add_u32 s{sT1}, s{sT1}, s{sT2}
        s_lshl_b32 s{sT1}, s{sT1}, 2
        s_add_u32 s{sT1}, s{sT1}, {WS_F}
        v_and_b32 v2, 3, v1
        v_lshlrev_b32 v2, 2, v2
        """)
        self.poll("ph", 2, 3, f"buffer_load_dword v3, v2, s[{S_WS}:{S_WS+3}], s{sT1} offen sc1")
        self.ts()
        a(f"""
        v_lshlrev_b32 v2, 4, v1
        s_mul_i32 s{sT1}, s{sRT}, 224
        s_mul_i32 s{sT2}, s{sW}, 28
        s_add_u32 s{sT1}, s{sT1}, s{sT2}
        s_lshl_b32 s{sT1}, s{sT1}, 10
        s_add_u32 s{sT1}, s{sT1}, {WS_H}
        s_lshl_b32 s{sKX}, s{sROT}, 12
        """)

        def ld(n):
            tt, i = divmod(n, 28)
            out = []
            if i % 4 == 0:
                if n == 28:
                    out.append(f"s_add_u32 s{sT1}, s{sT1}, {112*1024}")
                out += [f"s_add_u32 s{sT0}, s{sT1}, s{sKX}",
                        f"s_add_u32 s{sKX}, s{sKX}, 4096",
                        f"s_cmp_eq_u32 s{sKX}, {28*1024}",
                        f"s_cselect_b32 s{sKX}, 0, s{sKX}"]
            r = HR + 4 * (n % NR)
            out.append(f"buffer_load_dwordx4 v[{r}:{r+3}], v2, s[{S_WS}:{S_WS+3}], s{sT0} offen offset:{1024*(i%4)} sc1")
            return out

        AH = NR - 1
        for n in range(AH):
            for ln in ld(n):
                a(ln)
        a("s_waitcnt lgkmcnt(0)")
        for n in range(56):
            tt, i = divmod(n, 28)
            r = HR + 4 * (n % NR)
            a(f"s_waitcnt vmcnt({min(AH - 1, 55 - n)})")
            for ct in range(2):
                c = ACC + 16 * (2 * tt + ct)
                w = (2 * i + ct) * 4
                a(f"v_mfma_f32_32x32x16_bf16 v[{c}:{c+15}], a[{w}:{w+3}], v[{r}:{r+3}], " + ("0" if i == 0 else f"v[{c}:{c+15}]"))
                if ct == 0 and n + AH < 56:
                    for ln in ld(n + AH):
                        a(ln)
        self.ts()
        a(f"""
        v_and_b32 v2, 31, v1
        v_mul_u32_u24 v2, 272, v2
        v_lshrrev_b32 v3, 5, v1
        v_lshl_add_u32 v2, v3, 4, v2
        s_mul_i32 s{sT0}, s{sW}, {RS}
        v_add_u32 v2, s{sT0}, v2
        """)
        for tt in range(2):
            for ct in range(2):
                for q in range(4):
                    c = ACC + 16 * (2 * tt + ct) + 4 * q
                    a(f"ds_write_b128 v2, v[{c}:{c+3}] offset:{L_RED + 8704*tt + 128*ct + 32*q}")
        a(f"""
        s_lshl_b32 s{sT1}, s{sCB}, 7
        s_add_u32 s{sT1}, s{sT1}, {WS_F + 16*128}
        v_and_b32 v2, 31, v1
        v_lshlrev_b32 v2, 2, v2
        """)
        self.poll("pa", 2, 3, f"buffer_load_dword v3, v2, s[{S_WS}:{S_WS+3}], s{sT1} offen sc1")
        AV, GV, BV = 8, 16, 20
        a(f"""
        v_lshrrev_b32 v2, 3, v0
        v_and_b32 v3, 7, v0
        v_lshlrev_b32 v4, 15, v3
        v_lshl_add_u32 v4, v2, 2, v4
        s_lshl_b32 s{sT0}, s{sCB}, 18
        s_lshl_b32 s{sT1}, s{sRT}, 8
        s_add_u32 s{sT0}, s{sT0}, s{sT1}
        s_add_u32 s{sT0}, s{sT0}, {WS_A}
        s_add_u32 s{sT1}, s{sT1}, {WS_G}
        """)
        for m in range(4):
            for tt in range(2):
                a(f"buffer_load_dword v{AV+4*tt+m}, v4, s[{S_WS}:{S_WS+3}], s{sT0} offen offset:{128*tt} sc1")
            if m < 3:
                a(f"s_add_u32 s{sT0}, s{sT0}, 8192")
        a(f"""
        v_lshlrev_b32 v5, 2, v2
        buffer_load_dword v{GV}, v5, s[{S_WS}:{S_WS+3}], s{sT1} offen sc1
        buffer_load_dword v{GV+1}, v5, s[{S_WS}:{S_WS+3}], s{sT1} offen offset:128 sc1
        s_lshl_b32 s{sT0}, s{sCB}, 7
        v_lshl_add_u32 v5, v3, 4, s{sT0}
        global_load_dwordx4 v[{BV}:{BV+3}], v5, s[{S_B2}:{S_B2+1}]
        v_mul_u32_u24 v6, 896, v2
        v_add_u32 v5, v5, v6
        v_mul_u32_u24 v6, 272, v2
        v_lshl_add_u32 v6, v3, 5, v6
        s_mul_i32 s{sT0}, s{sRT}, {64*896}
        s_add_u32 s{sT1}, s{sT0}, {32*896}
        s_waitcnt lgkmcnt(0)
        s_barrier
        """)
        for tt in range(2):
            for w in range(4):
                for z in range(2):
                    r = 64 + 32 * tt + 8 * w + 4 * z
                    a(f"ds_read_b128 v[{r}:{r+3}], v6 offset:{L_RED + RS*w + 8704*tt + 16*z}")
        a("s_waitcnt vmcnt(0)")
        BF = 24
        for e in range(8):
            s = BV + e // 2
            a(f"v_lshlrev_b32 v{BF+e}, 16, v{s}" if e % 2 == 0 else f"v_and_b32 v{BF+e}, 0xffff0000, v{s}")
        for tt in range(2):
            b = 64 + 32 * tt
            a(f"""
            v_lshlrev_b32 v32, 16, v{GV+tt}
            v_and_b32 v33, 0xffff0000, v{GV+tt}
            s_waitcnt lgkmcnt({8 if tt == 0 else 0})
            """)
            for e in range(8):
                s = AV + 4 * tt + e // 2
                a(f"""
                v_add_f32 v{b+e}, v{b+e}, v{b+8+e}
                v_add_f32 v{b+16+e}, v{b+16+e}, v{b+24+e}
                v_add_f32 v{b+e}, v{b+e}, v{BF+e}
                """)
                a(f"v_lshlrev_b32 v{b+8+e}, 16, v{s}" if e % 2 == 0 else f"v_and_b32 v{b+8+e}, 0xffff0000, v{s}")
                a(f"""
                v_add_f32 v{b+e}, v{b+e}, v{b+16+e}
                v_mul_f32 v{b+8+e}, v32, v{b+8+e}
                v_fmac_f32 v{b+8+e}, v33, v{b+e}
                """)
            for e in range(0, 8, 2):
                a(f"v_cvt_pk_bf16_f32 v{b+e//2}, v{b+8+e}, v{b+8+e+1}")
            a(f"buffer_store_dwordx4 v[{b}:{b+3}], v5, s[{S_OUT}:{S_OUT+3}], s{sT0+tt} offen")
        self.ts()
        self.finish()

    def finish(self):
        a = self.a
        if self.prof:
            a(f"""
            s_waitcnt vmcnt(0)
            s_memtime s[2:3]
            s_waitcnt lgkmcnt(0)
            """) if False else None
            a(f"""
            s_waitcnt vmcnt(0)
            s_memrealtime s[{sT2+1}:{sT2+2}]
            s_lshl2_add_u32 s{sT0}, s2, s{sW}
            s_lshl_b32 s{sT0}, s{sT0}, 7
            s_add_u32 s{sT0}, s{sT0}, {WS_PROF}
            v_mov_b32 v2, 0
            s_mov_b64 exec, 1
            s_waitcnt lgkmcnt(0)
            """)
            for i in range(self.nts):
                a(f"v_mov_b32 v3, s{S_TS+2*i}")
                a(f"buffer_store_dword v3, v2, s[{S_WS}:{S_WS+3}], s{sT0} offen offset:{4*i}")
            a(f"v_mov_b32 v3, s{sT2+1}")
            a(f"buffer_store_dword v3, v2, s[{S_WS}:{S_WS+3}], s{sT0} offen offset:124")
        a("s_endpgm")

    def spare(self):
        a = self.a
        self.nts = 1
        PS = 1056
        BLK = 8 * PS
        GWV, R, O, GA = 8, 16, 48, 80
        a("L_spare:")
        a(f"""
        v_lshrrev_b32 v2, 3, v1
        v_and_b32 v3, 7, v1
        v_mul_u32_u24 v4, 896, v2
        v_lshl_add_u32 v4, v3, 4, v4
        s_mul_i32 s{sT0}, s2, {64*896}
        s_lshl_b32 s{sT1}, s{sW}, 7
        s_add_u32 s{sT0}, s{sT0}, s{sT1}
        s_mul_i32 s{sM0X}, s{sW}, {2*BLK}
        v_lshl_add_u32 v5, v2, 4, s{sT1}
        s_waitcnt lgkmcnt(0)
        """)
        for blk in range(2):
            if blk == 1:
                a(f"""
                s_cmp_eq_u32 s{sW}, 3
                s_cbranch_scc1 L_sp1
                """)
            a(f"global_load_dwordx4 v[{GWV+4*blk}:{GWV+4*blk+3}], v5, s[{S_GW}:{S_GW+1}] offset:{512*blk}")
            for p in range(8):
                a(f"""
                s_add_u32 m0, s{sM0X}, {blk*BLK + p*PS}
                s_add_u32 s{sT2}, s{sT0}, {p*7168 + 512*blk}
                buffer_load_dwordx4 v4, s[{S_X}:{S_X+3}], s{sT2} offen lds
                """)
        a(f"""
        L_sp1:
        v_mul_u32_u24 v6, {PS}, v3
        v_lshl_add_u32 v6, v2, 4, v6
        v_add_u32 v6, s{sM0X}, v6
        v_mul_u32_u24 v7, {8*UT_ROW}, v2
        v_lshl_add_u32 v7, v3, 4, v7
        s_mul_i32 s{sT0}, s{sW}, {64*UT_ROW}
        s_lshl_b32 s{sT1}, s2, 7
        s_add_u32 s{sT0}, s{sT0}, s{sT1}
        s_add_u32 s{sT0}, s{sT0}, {WS_UT + 128}
        s_mov_b32 s{sT3}, 0x05040100
        s_mov_b32 s{sT4}, 0x07060302
        s_mov_b32 s{sIT}, s{sW}
        """)
        for i in range(8):
            a(f"v_mov_b32 v{GA+i}, 0")
        a(f"""
        v_lshlrev_b32 v4, 4, v1
        s_add_u32 s{sT1}, s{sT1}, {WS_F}
        s_mov_b64 exec, 0xff
        buffer_store_dwordx4 v[{GA}:{GA+3}], v4, s[{S_WS}:{S_WS+3}], s{sT1} offen sc1
        s_mul_i32 s{sT1}, s2, {14*UT_ROW}
        s_add_u32 s{sT1}, s{sT1}, {WS_UT + 112}
        s_mov_b64 exec, 0x3fff
        v_mul_u32_u24 v4, {UT_ROW}, v1
        buffer_store_dwordx4 v[{GA}:{GA+3}], v4, s[{S_WS}:{S_WS+3}], s{sT1} offen sc1
        s_mov_b64 exec, -1
        s_waitcnt vmcnt(2)
        L_sp2:
        """)
        for i in range(8):
            a(f"ds_read_b128 v[{R+4*i}:{R+4*i+3}], v6 offset:{128*i}")
        a("s_waitcnt lgkmcnt(0)")
        for e in range(8):
            m, b = e >> 1, e & 1
            for q in range(4):
                a(f"v_perm_b32 v{O+4*e+q}, v{R+4*(2*q+1)+m}, v{R+4*(2*q)+m}, s{sT3+b}")
            a(f"buffer_store_dwordx4 v[{O+4*e}:{O+4*e+3}], v7, s[{S_WS}:{S_WS+3}], s{sT0} offen sc1")
            a(f"s_add_u32 s{sT0}, s{sT0}, {UT_ROW}")
        for m in range(4):
            for i in range(8):
                a(f"v_dot2c_f32_bf16 v{GA+i}, v{R+4*i+m}, v{GWV+m}")
        a(f"""
        s_add_u32 s{sT0}, s{sT0}, {(256-8)*UT_ROW}
        v_add_u32 v6, {BLK}, v6
        v_mov_b32 v{GWV}, v{GWV+4}
        v_mov_b32 v{GWV+1}, v{GWV+5}
        v_mov_b32 v{GWV+2}, v{GWV+6}
        v_mov_b32 v{GWV+3}, v{GWV+7}
        s_add_u32 s{sIT}, s{sIT}, 4
        s_cmp_lt_u32 s{sIT}, 7
        s_cbranch_scc1 L_sp2
        v_lshlrev_b32 v6, 5, v0
        v_add_u32 v6, {8*BLK}, v6
        ds_write_b128 v6, v[{GA}:{GA+3}]
        ds_write_b128 v6, v[{GA+4}:{GA+7}] offset:16
        v_and_b32 v6, 3, v0
        v_lshlrev_b32 v6, 11, v6
        v_and_b32 v4, 0xfc, v0
        v_add3_u32 v6, v6, v4, s{sT5}
        """.replace(f"s{sT5}", "0"))
        a(f"""
        v_add_u32 v6, {8*BLK}, v6
        s_waitcnt lgkmcnt(0)
        s_barrier
        """)
        for k in range(4):
            a(f"ds_read2st64_b32 v[{R+2*k}:{R+2*k+1}], v6 offset0:{2*k} offset1:{2*k+1}")
        a(f"""
        s_waitcnt lgkmcnt(0)
        v_add_f32 v{R}, v{R}, v{R+1}
        v_add_f32 v{R+2}, v{R+2}, v{R+3}
        v_add_f32 v{R+4}, v{R+4}, v{R+5}
        v_add_f32 v{R+6}, v{R+6}, v{R+7}
        v_add_f32 v{R}, v{R}, v{R+2}
        v_add_f32 v{R+4}, v{R+4}, v{R+6}
        v_add_f32 v{R}, v{R}, v{R+4}
        v_add_f32_dpp v{R}, v{R}, v{R} quad_perm:[1,0,3,2] row_mask:0xf bank_mask:0xf
        v_add_f32_dpp v{R}, v{R}, v{R} quad_perm:[2,3,0,1] row_mask:0xf bank_mask:0xf
        v_cvt_pk_bf16_f32 v{R}, v{R}, v{R}
        v_lshlrev_b32 v{R}, 16, v{R}
        v_mul_f32 v{R}, {hex(LOG2E | 0x80000000)}, v{R}
        v_exp_f32 v{R}, v{R}
        v_add_f32 v{R}, 1.0, v{R}
        v_rcp_f32 v{R}, v{R}
        v_cvt_pk_bf16_f32 v{R}, v{R}, v{R}
        v_lshlrev_b32 v{R}, 16, v{R}
        v_sub_f32 v{R+1}, 1.0, v{R}
        v_cvt_pk_bf16_f32 v{R}, v{R}, v{R+1}
        s_lshl_b32 s{sT0}, s2, 8
        s_add_u32 s{sT0}, s{sT0}, {WS_G}
        s_mov_b32 exec_lo, 0x11111111
        s_mov_b32 exec_hi, 0x11111111
        buffer_store_dword v{R}, v4, s[{S_WS}:{S_WS+3}], s{sT0} offen sc1
        s_mov_b64 exec, -1
        s_waitcnt vmcnt(0)
        s_barrier
        s_cmp_lg_u32 s{sW}, 0
        s_cbranch_scc1 L_sp3
        s_lshl_b32 s{sT0}, s2, 2
        v_mov_b32 v2, s{sT0}
        v_mov_b32 v3, 1
        s_mov_b64 exec, 1
        global_store_dword v2, v3, s[{S_DBG}:{S_DBG+1}] sc1
        s_mov_b64 exec, -1
        L_sp3:
        """)
        self.ts()
        self.finish()

    def build(self):
        self.prologue()
        self.main()
        self.spare()
        self.a("L_end:\ns_endpgm")
        lines, n = hazard.fix(self.a.lines, verbose="-v" in sys.argv)
        print("nops inserted (wait states):", n)
        return module([dict(name=NAME + "_kernel", grid=256, block=256, lds=163840, body="\n".join(lines) + "\n",
                            vgpr=256, agpr=256)], single=True)


if __name__ == "__main__":
    open("k.s", "w").write(G().build())
    open("kd.s", "w").write(G(prof=True, dbg=True).build())
    open("kp.s", "w").write(G(prof=True).build())
```
